```python
import torch

def _softmax(x, axis=-1):
    return torch.softmax(x, dim=axis)
def _gelu(x):
    return torch.nn.functional.gelu(x, approximate="tanh")
def _silu(x):
    return torch.nn.functional.silu(x)
def _sigmoid(x):
    return torch.sigmoid(x)
def _layernorm(x, axis=-1, eps=1e-5):
    m = x.mean(dim=axis, keepdim=True)
    v = x.var(dim=axis, keepdim=True, unbiased=False)
    return (x - m) / torch.sqrt(v + eps)
def _scatter_add(tgt, idx, src, axis=0):
    return tgt.clone().index_add_(axis, idx, src)
def _segment_sum(src, seg, n):
    out = torch.zeros((n,) + src.shape[1:], dtype=src.dtype)
    return out.index_add_(0, seg, src)
def _pad(x, pw):
    flat = tuple(v for pair in reversed(pw) for v in pair)
    return torch.nn.functional.pad(x, flat)

kernel_name = 'sequential_preLN__ssm_conv_s4d__glu_gated_reglu__prompt'

def setup_inputs():

    _w = (lambda a: (lambda t: t.to(torch.bfloat16) if t.is_floating_point() else t)(torch.as_tensor(a)))
    def _A_setup():
        Bsz, L, D, N = 1, 2048, 576, 128
        return {
            "u": _w((lambda *s: torch.randn(*s, dtype=torch.bfloat16) * 0.05)(Bsz, L, D)),
            "log_A_real": _w((lambda *s: torch.randn(*s, dtype=torch.bfloat16) * 6.4)(D, N) * 0.5),
            "A_imag": _w((lambda *s: torch.randn(*s, dtype=torch.bfloat16) * 0.05)(D, N) * 3.14),
            "C_real": _w((lambda *s: torch.randn(*s, dtype=torch.bfloat16) * 0.05)(D, N) / N ** 0.5),
            "C_imag": _w((lambda *s: torch.randn(*s, dtype=torch.bfloat16) * 0.05)(D, N) / N ** 0.5),
            "log_dt": _w((lambda *s: torch.randn(*s, dtype=torch.bfloat16) * 0.05)(D) * 0.5 - 4.0),
            "D_skip": _w((lambda *s: torch.randn(*s, dtype=torch.bfloat16) * 0.05)(D)),
        }
    _A_in = _A_setup()

    def _B_setup():
        B, S, D, F = 1, 2048, 576, 4608
        return {
            "x": _w((lambda *s: torch.randn(*s, dtype=torch.bfloat16) * 0.05)(B, S, D)),
            "W_gate": _w((lambda *s: torch.randn(*s, dtype=torch.bfloat16) * 0.4)(D, F) * (2.0 / D) ** 0.5),
            "W_up": _w((lambda *s: torch.randn(*s, dtype=torch.bfloat16) * 0.4)(D, F) * (2.0 / D) ** 0.5),
            "W_down": _w((lambda *s: torch.randn(*s, dtype=torch.bfloat16) * 0.4)(F, D) * (1.0 / F) ** 0.5),
        }
    _B_in = _B_setup()

    return {
        "A_u": _A_in["u"],
        "A_log_A_real": _A_in["log_A_real"],
        "A_A_imag": _A_in["A_imag"],
        "A_C_real": _A_in["C_real"],
        "A_C_imag": _A_in["C_imag"],
        "A_log_dt": _A_in["log_dt"],
        "A_D_skip": _A_in["D_skip"],
        "B_x": _B_in["x"],
        "B_W_gate": _B_in["W_gate"],
        "B_W_up": _B_in["W_up"],
        "B_W_down": _B_in["W_down"],
    }

def reference(A_u, A_log_A_real, A_A_imag, A_C_real, A_C_imag, A_log_dt, A_D_skip, B_x, B_W_gate, B_W_up, B_W_down):
    def _A_ref(u, log_A_real, A_imag, C_real, C_imag, log_dt, D_skip):
        L = u.shape[1]
        dt = torch.exp(log_dt)
        A = -torch.exp(log_A_real) + 1j * A_imag
        C = (C_real + 1j * C_imag) * dt[:, None]
        pos = (lambda x, dt: x.to(dt))(torch.arange(L), log_dt.dtype)
        P = torch.exp((A * dt[:, None])[:, :, None] * pos[None, None, :])
        K = 2.0 * torch.einsum("dn,dnl->dl", C, P).real
        L2 = 2 * L
        u_t = (lambda x, *d: x.permute(*d))(u, 0, 2, 1)
        Kf = (lambda x, *a, **k: torch.fft.rfft(x.float(), *a, **k))(K, L2)
        Uf = (lambda x, *a, **k: torch.fft.rfft(x.float(), *a, **k))(u_t, L2)
        y = (lambda x, *a, **k: torch.fft.irfft(x, *a, **k).to(torch.bfloat16))(Uf * Kf[None, :, :], L2)[:, :, :L]
        y = (lambda x, *d: x.permute(*d))(y, 0, 2, 1)
        return y + u * D_skip[None, None, :]

    def _B_ref(x, W_gate, W_up, W_down):
        gate = torch.einsum("bsd,df->bsf", x, W_gate)
        up = torch.einsum("bsd,df->bsf", x, W_up)
        gate = gate * (lambda x, dt: x.to(dt))(gate > 0, gate.dtype)
        h = gate * up
        return torch.einsum("bsf,fd->bsd", h, W_down)

    x = A_u
    h = x + _A_ref(_layernorm(x, axis=-1), A_log_A_real, A_A_imag, A_C_real, A_C_imag, A_log_dt, A_D_skip)
    h2 = h + _B_ref(_layernorm(h, axis=-1), B_W_gate, B_W_up, B_W_down)
    return h2
```

```python
import re

def vr(a, n=1):
    return f"v{a}" if n == 1 else f"v[{a}:{a+n-1}]"
def ar(a, n=1):
    return f"a{a}" if n == 1 else f"a[{a}:{a+n-1}]"
def sr(a, n=1):
    return f"s{a}" if n == 1 else f"s[{a}:{a+n-1}]"

class Asm:
    def __init__(self):
        self.lines = []
        self.vm_issued = 0
        self.lg_issued = 0
    def __call__(self, s):
        for l in s.split("\n"):
            l = l.strip()
            if l: self.lines.append(l)
    def c(self, s):
        self.lines.append("; " + s)
    def label(self, s):
        self.lines.append(s + ":")
    def vm(self, s):
        self(s); self.vm_issued += 1
        return self.vm_issued
    def wait_vm(self, tok):
        n = self.vm_issued - tok
        assert 0 <= n <= 63, n
        self(f"s_waitcnt vmcnt({n})")
    def lg(self, s):
        self(s); self.lg_issued += 1
        return self.lg_issued
    def wait_lg(self, tok):
        n = self.lg_issued - tok
        assert 0 <= n <= 15, n
        self(f"s_waitcnt lgkmcnt({n})")
    def text(self):
        out = []
        for l in self.lines:
            if l.endswith(":") or l.startswith(".") : out.append(l)
            else: out.append("  " + l)
        return "\n".join(out) + "\n"

REG_RE = re.compile(r"\b([vas])(\d+)\b|\b([vas])\[(\d+):(\d+)\]|\b(vcc|exec|m0|scc)\b")
def regs_of(op):
    res = set()
    for m in REG_RE.finditer(op):
        if m.group(1): res.add((m.group(1), int(m.group(2))))
        elif m.group(3):
            for i in range(int(m.group(4)), int(m.group(5)) + 1): res.add((m.group(3), i))
        else: res.add((m.group(6), 0))
    return res

TRANS = ("v_exp_f32", "v_log_f32", "v_rcp_f32", "v_rsq_f32", "v_sqrt_f32", "v_sin_f32", "v_cos_f32", "v_rcp_iflag_f32")
def split_ops(rest):
    ops, depth, cur = [], 0, ""
    for ch in rest:
        if ch == "[": depth += 1
        if ch == "]": depth -= 1
        if ch == "," and depth == 0: ops.append(cur.strip()); cur = ""
        else: cur += ch
    if cur.strip(): ops.append(cur.strip())
    return ops

class Ins:
    def __init__(self, line):
        self.line = line
        t = line.split(None, 1)
        self.op = t[0]
        rest = t[1] if len(t) > 1 else ""
        rest = rest.split(";")[0]
        self.ops = split_ops(rest)
        op = self.op
        self.is_mfma = op.startswith("v_mfma")
        self.is_valu = op.startswith("v_") and not self.is_mfma
        self.is_trans = any(op.startswith(x) for x in TRANS)
        self.is_ds = op.startswith("ds_")
        self.is_vmem = op.startswith(("buffer_", "global_", "flat_"))
        self.is_store = self.is_vmem and ("store" in op or "atomic" in op)
        self.is_salu = op.startswith("s_")
        self.dst, self.src = set(), set()
        o = self.ops
        first = lambda i: regs_of(o[i].split(" ")[0]) if i < len(o) else set()
        allr = lambda lst: set().union(*[regs_of(x) for x in lst]) if lst else set()
        self.passes = 0
        if self.is_mfma:
            self.dst = regs_of(o[0]); self.A = regs_of(o[1]); self.B = regs_of(o[2]); self.C = regs_of(o[3].split(" ")[0])
            self.src = self.A | self.B | self.C
            self.passes = 8 if "32x32" in op else 4
            if "_f32_32x32x2" in op: self.passes = 16
            if op.endswith("x4_f32"): self.passes = 8
        elif self.is_valu:
            if op.startswith("v_cmp"):
                self.dst = regs_of(o[0]); self.src = allr(o[1:])
                if op.startswith("v_cmpx"): self.dst |= {("exec", 0)}
            elif op.startswith(("v_readfirstlane", "v_readlane")):
                self.dst = regs_of(o[0]); self.src = allr(o[1:])
            elif op.startswith(("v_permlane32_swap", "v_permlane16_swap", "v_swap")):
                self.dst = regs_of(o[0]) | regs_of(o[1]); self.src = set(self.dst)
            elif op.startswith(("v_add_co", "v_sub_co", "v_addc_co", "v_subb_co", "v_div_scale", "v_mad_u64")):
                self.dst = regs_of(o[0]) | regs_of(o[1]); self.src = allr(o[2:])
            else:
                self.dst = regs_of(o[0]); self.src = allr(o[1:])
                if op.startswith(("v_fmac", "v_dot2c", "v_pk_fmac", "v_writelane")) or "d16_hi" in op or "op_sel" in line and op.startswith("v_cvt"):
                    self.src |= self.dst
                if op.startswith("v_cndmask") and len(o) == 3: self.src |= {("vcc", 0)}
        elif self.is_ds:
            if op.startswith(("ds_read", "ds_bpermute", "ds_permute", "ds_swizzle")) or "rtn" in op:
                self.dst = regs_of(o[0]); self.src = allr(o[1:])
                if "d16" in op: self.src |= self.dst
            else:
                self.src = allr(o)
        elif self.is_vmem:
            lds = re.search(r"\blds\b", line) or "load_lds" in op
            if "load" in op and not lds:
                self.dst = regs_of(o[0]); self.src = allr(o[1:])
            else:
                self.src = allr(o)
                if lds: self.src |= {("m0", 0)}
                if "atomic" in op and "sc0" in line: self.dst = regs_of(o[0]) if op.startswith("buffer") else set()
            if self.is_store:
                self.data = regs_of(o[0]) if op.startswith("buffer") else regs_of(o[1])
        elif self.is_salu:
            if op.startswith(("s_cmp", "s_cbranch", "s_branch", "s_waitcnt", "s_barrier", "s_nop", "s_endpgm", "s_setprio", "s_sleep")):
                self.src = allr(o)
            else:
                self.dst = regs_of(o[0]) if o else set(); self.src = allr(o[1:])
        self.states = 1
        if op == "s_nop": self.states = int(o[0], 0) + 1

def check_hazards(lines, name=""):
    ins = []
    for l in lines:
        l = l.strip()
        if not l or l.startswith(";") or l.startswith(".") or l.endswith(":"): continue
        ins.append(Ins(l))
    probs = []
    def dist(i, j):
        return sum(ins[k].states for k in range(i + 1, j))
    W = 24
    for j, b in enumerate(ins):
        for i in range(j - 1, max(-1, j - W), -1):
            a = ins[i]
            d = dist(i, j)
            if d > 20: break
            def bad(need, why):
                if d < need: probs.append(f"{name}: need {need} have {d} [{why}]\n    {a.line}\n    {b.line}")
            vg = lambda s: {r for r in s if r[0] in "va"}
            sg = lambda s: {r for r in s if r[0] in ("s", "vcc")}
            if a.is_valu and b.is_mfma and vg(a.dst) & b.src: bad(2, "VALU->MFMA")
            if a.is_mfma:
                need = {4: 8, 8: 12, 16: 20}[a.passes]
                if b.is_mfma:
                    if a.dst & (b.A | b.B): bad(need, "MFMA D->MFMA A/B")
                    if a.dst & b.C and not (a.dst == b.C and a.passes == b.passes): bad({4: 6, 8: 10, 16: 18}[a.passes], "MFMA D->overlap C")
                elif (b.is_valu or b.is_vmem or b.is_ds) and a.dst & (b.src | b.dst): bad(need, "MFMA D->VALU/VMEM/DS")
                if b.is_valu and a.C & b.dst and not (a.dst & b.dst): bad({4: 3, 8: 7, 16: 15}[a.passes], "MFMA C WAR")
            if a.op.startswith("v_dot") and a.dst & (b.src | b.dst):
                if b.op == a.op and not (a.dst & (b.src - b.dst)): pass
                elif b.op == a.op and a.dst & b.dst and len(a.dst & regs_of(" ".join(b.ops[1:]))) == 0: pass
                else: bad(3, "DOT->other")
            if a.is_trans and b.is_valu and not b.is_trans and a.dst & b.src: bad(1, "trans->VALU")
            if a.is_trans and b.is_mfma and a.dst & b.src: bad(2, "trans->MFMA")
            if a.is_valu and b.op.startswith("v_permlane") and vg(a.dst) & b.src: bad(2, "VALU->permlane")
            if a.is_valu and ("dpp" in b.line or "row_" in b.line or "quad_perm" in b.line) and b.is_valu and vg(a.dst) & b.src: bad(2, "VALU->DPP")
            if a.is_valu and b.op.startswith(("v_readfirstlane", "v_readlane")) and vg(a.dst) & b.src: bad(1, "VALU->readlane")
            if a.is_valu and sg(a.dst):
                if b.is_valu and sg(a.dst) & b.src:
                    if b.op.startswith(("v_readlane", "v_writelane")): bad(4, "VALU sgpr->lane select")
                    else: bad(2, "VALU sgpr->VALU")
                if b.is_vmem and sg(a.dst) & b.src: bad(5, "VALU sgpr->VMEM")
            if a.is_valu and ("exec", 0) in a.dst and b.is_mfma: bad(4, "VALU exec->MFMA")
            if a.is_salu and ("m0", 0) in a.dst and ("m0", 0) in b.src and b.is_vmem: bad(1, "m0->lds dma")
            if a.is_store and ("x4" in a.op or "x3" in a.op) and (b.is_valu or b.is_ds or b.is_vmem) and a.data & b.dst: bad(2 if b.is_valu else 1, "store data WAR")
    return probs
```

```python
from asmlib import *

NAME = "sequential_preLN__ssm_conv_s4d__glu_gated_reglu__prompt"
L_, D_, N_, F_ = 2048, 576, 128, 4608

KA_X, KA_LOGA, KA_AIM, KA_CRE, KA_CIM, KA_LOGDT, KA_DSKIP, KA_BX, KA_WG, KA_WU, KA_WD, KA_OUT, KA_DBG, KA_WS = [8*i for i in range(14)]

OFF_WF  = 0x0000000
OFF_CF  = 0x0A20000
OFF_WDF = 0x0A80000
OFF_HT  = 0x1000000
OFF_UT  = 0x1240000
OFF_XT  = 0x1480000
OFF_KR  = 0x16C0000
OFF_HF  = 0x2000000
SZ_WF, SZ_CF, SZ_WDF, SZ_T, SZ_HF = 288*36*1024, 288*1024, 8*144*4608, 576*2048*2, 64*288*1024
SZ_W = 576*4608*2

def srd(a, s, base_lo, base_hi, size):
    a(f"s_mov_b32 s{s}, s{base_lo}")
    a(f"s_and_b32 s{s+1}, s{base_hi}, 0xffff")
    a(f"s_mov_b32 s{s+2}, {size}")
    a(f"s_mov_b32 s{s+3}, 0x20000")

def srd_off(a, s, base_lo, base_hi, off, size):
    a(f"s_add_u32 s{s}, s{base_lo}, {off}")
    a(f"s_addc_u32 s{s+1}, s{base_hi}, 0")
    a(f"s_and_b32 s{s+1}, s{s+1}, 0xffff")
    a(f"s_mov_b32 s{s+2}, {size}")
    a(f"s_mov_b32 s{s+3}, 0x20000")

def kernel_header(name):
    return f".globl {name}\n.p2align 8\n.type {name},@function\n{name}:\n"

def kernel_desc(name, vgpr, accum, sgpr=102):
    return f""".section .rodata,"a"
.p2align 6
.amdhsa_kernel {name}
  .amdhsa_next_free_vgpr {vgpr}
  .amdhsa_next_free_sgpr {sgpr}
  .amdhsa_accum_offset {accum}
  .amdhsa_group_segment_fixed_size 0
  .amdhsa_kernarg_size 112
  .amdhsa_user_sgpr_count 2
  .amdhsa_user_sgpr_kernarg_segment_ptr 1
  .amdhsa_system_sgpr_workgroup_id_x 1
  .amdhsa_float_denorm_mode_32 3
  .amdhsa_float_denorm_mode_16_64 3
.end_amdhsa_kernel
.text
"""

OFF_STAMP = 0x3800000
class Stamps:
    def __init__(self, a, enable, base=60):
        self.a, self.en, self.base, self.n = a, enable, base, 0
    def stamp(self):
        if not self.en: return
        a = self.a
        a("s_memtime s[98:99]")
        a("s_waitcnt lgkmcnt(0)")
        a(f"s_mov_b32 s{self.base + self.n}, s98")
        self.n += 1
    def stamp_dyn(self, idx_sreg, first):
        if not self.en: return
        a = self.a
        a("s_memtime s[98:99]")
        a("s_waitcnt lgkmcnt(0)")
        a(f"s_mov_b32 m0, s{idx_sreg}")
        a("s_nop 0")
        a(f"s_movreld_b32 s{first}, s98")
    def real(self, idx):
        if not self.en: return
        a = self.a
        a("s_memrealtime s[98:99]")
        a("s_waitcnt lgkmcnt(0)")
        a(f"s_mov_b32 s{self.base + idx}, s98")
    def dump(self, ws_lo, ws_hi, wave_sreg, nst, vtmp=250):
        if not self.en: return
        a = self.a
        srd_off(a, 92, ws_lo, ws_hi, OFF_STAMP, 0x100000)
        a(f"v_mov_b32 v{vtmp}, 0")
        for i in range(nst):
            a(f"v_writelane_b32 v{vtmp}, s{self.base + i}, {i}")
        a(f"v_mbcnt_lo_u32_b32 v{vtmp+1}, -1, 0")
        a(f"v_mbcnt_hi_u32_b32 v{vtmp+1}, -1, v{vtmp+1}")
        a(f"v_lshlrev_b32 v{vtmp+1}, 2, v{vtmp+1}")
        a(f"s_lshl_b32 s97, s2, 2")
        a(f"s_add_u32 s97, s97, s{wave_sreg}")
        a(f"s_lshl_b32 s97, s97, 8")
        a(f"buffer_store_dword v{vtmp}, v{vtmp+1}, s[92:95], s97 offen")
```

```python
from gen_common import *
import numpy as np

OFF_STATS = 0x1700000

TROW = 544
TCH = 57 * TROW
KCB = 4 * TCH
KCCH = 1552
TB, TCOPY, TCHB = 0, 4160, 16640
UB, UCH = 66560, 7600
XBB = 96960
LDS_CONV = KCB + 4 * KCCH

def bf16_round_int(t):
    f = np.float32(t); u = np.array([f]).view(np.uint32)[0]
    r = ((int(u) + 0x7FFF + ((int(u) >> 16) & 1)) >> 16) << 16
    return int(np.array([r], dtype=np.uint32).view(np.float32)[0])

BASES = list(range(8)) + list(range(128, 136)) + [256, 258, 260, 262, 384, 386, 388, 390] + [512, 516, 640, 644, 768, 772, 896, 900] + [1024 + 128*j for j in range(9)]
def kc_index(v):
    for row, b in enumerate(BASES):
        if v >= b and (v - b) % 8 == 0 and (v - b) // 8 < 16:
            return row, (v - b) // 8
    raise ValueError(v)
def idx_table():
    tab = []
    for i in range(256):
        for e in range(12):
            x = 8*i + e; t = 2047 - x
            if t < 0: tab.append(1536)
            else:
                row, col = kc_index(bf16_round_int(t))
                tab.append((row*16 + col)*2)
    return tab

def cmul(a, d, x, y, tmp):
    a(f"v_pk_mul_f32 v[{tmp}:{tmp+1}], v[{x}:{x+1}], v[{y}:{y+1}] op_sel:[0,0] op_sel_hi:[0,1]")
    a(f"v_pk_fma_f32 v[{d}:{d+1}], v[{x}:{x+1}], v[{y}:{y+1}], v[{tmp}:{tmp+1}] op_sel:[1,1,0] op_sel_hi:[1,0,1] neg_lo:[0,1,0]")

def rnd(a, dst, src):
    a(f"v_cvt_pk_bf16_f32 v{dst}, v{src}, v{src}")
    a(f"v_and_b32 v{dst}, 0xffff0000, v{dst}")

OFF_DUMP = 0x3A00000
def dump_lds(a, point, want):
    if point != want: return
    a("s_cmp_lg_u32 s2, 0")
    a(f"s_cbranch_scc1 dump_skip{point}")
    srd_off(a, 88, 18, 19, OFF_DUMP, 0x40000)
    a("v_lshlrev_b32 v240, 4, v0")
    for i in range(16):
        a(f"ds_read_b128 v[244:247], v240")
        a("s_waitcnt lgkmcnt(0)")
        a(f"buffer_store_dwordx4 v[244:247], v240, s[88:91], 0 offen")
        a("s_waitcnt vmcnt(0)")
        a("v_add_u32 v240, 8192, v240")
    a.label(f"dump_skip{point}")
    a("s_barrier")

def gen_conv(name="conv_kernel", stamps=False, dump=0):
    a = Asm(); P = name
    st = Stamps(a, stamps)
    st.real(14); st.stamp()
    a("s_cmp_ge_u32 s2, 144")
    a(f"s_cbranch_scc1 {P}_end")
    a(f"s_load_dwordx4 s[4:7], s[0:1], {KA_X}")
    a(f"s_load_dwordx4 s[8:11], s[0:1], {KA_AIM}")
    a(f"s_load_dwordx4 s[12:15], s[0:1], {KA_CIM}")
    a(f"s_load_dwordx2 s[16:17], s[0:1], {KA_DSKIP}")
    a(f"s_load_dwordx2 s[18:19], s[0:1], {KA_WS}")
    a("s_getpc_b64 s[20:21]")
    a.label(f"{P}_pc")
    a(f"s_add_u32 s20, s20, {P}_idx-{P}_pc")
    a("s_addc_u32 s21, s21, 0")
    LANE, WV = 1, 2
    a(f"v_and_b32 v{LANE}, 63, v0")
    a(f"v_lshrrev_b32 v{WV}, 6, v0")
    a("s_nop 0")
    a(f"v_readfirstlane_b32 s3, v{WV}")
    IDXR = 8
    a("v_and_b32 v3, 255, v0")
    a("v_mul_u32_u24 v3, 24, v3")
    for q in range(3):
        a(f"global_load_dwordx2 v[{IDXR+2*q}:{IDXR+2*q+1}], v3, s[20:21] offset:{8*q}")
    a("s_waitcnt lgkmcnt(0)")
    srd(a, 24, 4, 5, L_*D_*2)
    srd(a, 28, 6, 7, D_*N_*2)
    srd(a, 32, 8, 9, D_*N_*2)
    srd(a, 36, 10, 11, D_*N_*2)
    srd(a, 40, 12, 13, D_*N_*2)
    srd(a, 44, 14, 15, D_*2)
    srd(a, 48, 16, 17, D_*2)
    srd_off(a, 52, 18, 19, OFF_STATS, 8192)
    srd_off(a, 56, 18, 19, OFF_HT, SZ_T)
    a("s_lshr_b32 s22, s3, 1")
    a("s_lshl_b32 s23, s2, 2")
    a("s_add_u32 s23, s23, s22")
    a("s_and_b32 s4, s3, 1")
    a("s_lshl_b32 s4, s4, 6")
    a("s_lshl_b32 s5, s23, 7")
    a("s_add_u32 s5, s5, s4")
    a("s_lshl_b32 s5, s5, 1")
    a(f"v_lshlrev_b32 v3, 1, v{LANE}")
    PL, PA, PCR, PCI, PDT = 26, 27, 28, 29, 30
    a(f"buffer_load_ushort v{PL}, v3, s[28:31], s5 offen")
    a(f"buffer_load_ushort v{PA}, v3, s[32:35], s5 offen")
    a(f"buffer_load_ushort v{PCR}, v3, s[36:39], s5 offen")
    a(f"buffer_load_ushort v{PCI}, v3, s[40:43], s5 offen")
    a("s_lshl_b32 s6, s23, 1")
    a(f"v_mov_b32 v4, s6")
    a(f"buffer_load_ushort v{PDT}, v4, s[44:47], 0 offen")
    PDS = 200
    a("s_and_b32 s6, s3, 3")
    a("s_lshl_b32 s7, s2, 2")
    a("s_add_u32 s6, s6, s7")
    a("s_lshl_b32 s6, s6, 1")
    a(f"v_mov_b32 v5, s6")
    a(f"buffer_load_ushort v{PDS}, v5, s[48:51], 0 offen")
    XG, SG = 32, 40
    a("v_mul_u32_u24 v6, 1152, v0")
    a("s_lshl_b32 s7, s2, 3")
    a("v_lshlrev_b32 v7, 2, v0")
    for i in range(4):
        a(f"s_add_u32 s8, s7, {i*512*1152}")
        a(f"buffer_load_dwordx2 v[{XG+2*i}:{XG+2*i+1}], v6, s[24:27], s8 offen")
    for i in range(4):
        a(f"s_movk_i32 s8, {i*2048}")
        a(f"buffer_load_dword v{SG+i}, v7, s[52:55], s8 offen")
    st.stamp()
    a("s_waitcnt vmcnt(9)")
    LOG2E = "0x3fb8aa3b"; INV2PI = "0x3e22f983"
    T = 44
    a(f"v_lshlrev_b32 v{PL}, 16, v{PL}")
    a(f"v_lshlrev_b32 v{PA}, 16, v{PA}")
    a(f"v_lshlrev_b32 v{PCR}, 16, v{PCR}")
    a(f"v_lshlrev_b32 v{PCI}, 16, v{PCI}")
    a(f"v_lshlrev_b32 v{PDT}, 16, v{PDT}")
    a(f"v_mul_f32 v{PL}, {LOG2E}, v{PL}")
    a(f"v_mul_f32 v{PDT}, {LOG2E}, v{PDT}")
    a(f"v_exp_f32 v{PL}, v{PL}")
    a(f"v_exp_f32 v{PDT}, v{PDT}")
    a("s_nop 0")
    rnd(a, PL, PL)
    rnd(a, PDT, PDT)
    A2, B1 = 44, 45
    a(f"v_mul_f32 v{A2}, v{PL}, v{PDT}")
    a(f"v_mul_f32 v{B1}, v{PA}, v{PDT}")
    a(f"v_mul_f32 v{A2}, 0xbfb8aa3b, v{A2}")
    a(f"v_mul_f32 v{B1}, {INV2PI}, v{B1}")
    R = 46
    a(f"v_add_f32 v{PDT}, v{PDT}, v{PDT}")
    a(f"v_mul_f32 v{R}, v{PCR}, v{PDT}")
    a(f"v_mul_f32 v{R+1}, v{PCI}, v{PDT}")
    def direct(d, log2t, t0):
        sc = float(2**log2t)
        if log2t == 0:
            a(f"v_exp_f32 v{t0}, v{A2}")
            a(f"v_fract_f32 v{t0+1}, v{B1}")
        else:
            a(f"v_ldexp_f32 v{t0}, v{A2}, {log2t}")
            a(f"v_ldexp_f32 v{t0+1}, v{B1}, {log2t}")
            a(f"v_exp_f32 v{t0}, v{t0}")
            a(f"v_fract_f32 v{t0+1}, v{t0+1}")
        a(f"v_cos_f32 v{d}, v{t0+1}")
        a(f"v_sin_f32 v{d+1}, v{t0+1}")
        a("s_nop 0")
        a(f"v_mul_f32 v{d}, v{d}, v{t0}")
        a(f"v_mul_f32 v{d+1}, v{d+1}, v{t0}")
    Q = 48
    P8, P16, W = 62, 64, 66
    TM = 68
    EV, EO = 76, 78
    OUT = 80
    G = 88
    q = lambda r: Q + 2*(r-1)
    direct(q(1), 0, TM); direct(P8, 3, TM+2); direct(W, 7, TM+4)
    VT = 3
    a(f"s_mul_i32 s6, s22, {TCH}")
    a(f"s_lshl_b32 s7, s4, 2")
    a(f"s_add_u32 s6, s6, s7")
    a(f"v_lshl_add_u32 v{VT}, v{LANE}, 2, s6")
    nout = [0]
    def emit(row, pair, neg):
        o = OUT + (nout[0] % 8); nout[0] += 1
        a(f"v_cvt_pk_bf16_f32 v{o}, v{pair}, {'-' if neg else ''}v{pair+1}")
        a(f"ds_write_b32 v{VT}, v{o} offset:{row*TROW}")
    cmul(a, q(2), q(1), q(1), TM); cmul(a, P16, P8, P8, TM+2)
    cmul(a, q(3), q(2), q(1), TM); cmul(a, q(4), q(2), q(2), TM+2)
    cmul(a, q(5), q(4), q(1), TM); cmul(a, q(6), q(4), q(2), TM+2); cmul(a, q(7), q(4), q(3), TM+4)
    a(f"v_mov_b32 v{EV}, 1.0"); a(f"v_mov_b32 v{EV+1}, 0")
    emit(41, EV, False); emit(42, P8, False)
    a(f"v_mov_b32 v{EO}, v{P8}"); a(f"v_mov_b32 v{EO+1}, v{P8+1}")
    work = []
    for c in range(2, 16):
        reg = EV if c % 2 == 0 else EO
        work.append(("E", c, reg))
    gwork = []
    row = 0
    for j in range(17):
        if j > 0: gwork.append(("R",))
        rs = list(range(8)) if j < 2 else ([0, 2, 4, 6] if j < 4 else ([0, 4] if j < 8 else [0]))
        for r in rs:
            gwork.append(("G", row, r)); row += 1
    assert row == 41
    gi = 0; k = 0
    while work or gi < len(gwork):
        if work:
            _, c, reg = work.pop(0)
            cmul(a, reg, reg, P16, TM)
            emit(41 + c, reg, False)
        for _ in range(4):
            if gi >= len(gwork): break
            g = gwork[gi]; gi += 1
            if g[0] == "R":
                cmul(a, R, R, W, TM+2)
            else:
                _, row, r = g
                if r == 0: emit(row, R, True)
                else:
                    d = G + 2*(k % 4); t = TM + 4 + 2*(k % 2); k += 1
                    cmul(a, d, R, q(r), t)
                    emit(row, d, True)
    for e in range(6):
        a(f"v_and_b32 v{14+2*e}, 0xffff, v{IDXR+e}")
        a(f"v_lshrrev_b32 v{15+2*e}, 16, v{IDXR+e}")
    a("s_waitcnt lgkmcnt(0)")
    a("s_barrier")
    dump_lds(a, 1, dump)
    st.stamp()
    a(f"v_and_b32 v3, 15, v{LANE}")
    a(f"v_lshrrev_b32 v4, 4, v{LANE}")
    a(f"v_mul_u32_u24 v5, {TROW}, v3")
    a(f"v_lshl_add_u32 v5, v4, 4, v5")
    a(f"v_lshlrev_b32 v6, 7, v4")
    a(f"v_lshl_add_u32 v6, v3, 1, v6")
    a("s_mov_b32 s8, s3")
    a.label(f"{P}_kj")
    a("s_mul_i32 s9, s8, 43")
    a("s_lshr_b32 s9, s9, 7")
    a("s_mul_i32 s10, s9, 3")
    a("s_sub_u32 s10, s8, s10")
    a(f"s_mul_i32 s11, s9, {TCH}")
    a(f"s_mul_i32 s12, s10, {16*TROW}")
    a("s_add_u32 s12, s12, s11")
    a(f"s_add_u32 s13, s11, {41*TROW}")
    a("v_add_u32 v7, s12, v5")
    a("v_add_u32 v96, s13, v5")
    FA, FB, DK = 100, 132, 164
    for s in range(8):
        a(f"ds_read_b128 v[{FA+4*s}:{FA+4*s+3}], v7 offset:{64*s}")
        a(f"ds_read_b128 v[{FB+4*s}:{FB+4*s+3}], v96 offset:{64*s}")
        if s == 6: pass
    for s in range(8):
        a(f"s_waitcnt lgkmcnt({14 - 2*s})")
        a(f"v_mfma_f32_16x16x32_bf16 v[{DK}:{DK+3}], v[{FA+4*s}:{FA+4*s+3}], v[{FB+4*s}:{FB+4*s+3}], {'0' if s == 0 else f'v[{DK}:{DK+3}]'}")
    a(f"s_mul_i32 s11, s9, {KCCH}")
    a(f"s_lshl_b32 s12, s10, 9")
    a("s_add_u32 s11, s11, s12")
    a(f"s_add_u32 s11, s11, {KCB}")
    a("v_add_u32 v7, s11, v6")
    a("s_nop 4")
    a(f"v_cvt_pk_bf16_f32 v{DK+4}, v{DK}, v{DK+1}")
    a(f"v_cvt_pk_bf16_f32 v{DK+5}, v{DK+2}, v{DK+3}")
    a(f"ds_write_b16 v7, v{DK+4}")
    a(f"ds_write_b16_d16_hi v7, v{DK+4} offset:32")
    a(f"ds_write_b16 v7, v{DK+5} offset:64")
    a(f"ds_write_b16_d16_hi v7, v{DK+5} offset:96")
    a("s_add_u32 s8, s8, 8")
    a("s_cmp_lt_u32 s8, 12")
    a(f"s_cbranch_scc1 {P}_kj")
    a(f"v_mul_u32_u24 v7, {KCCH}, v0")
    a(f"v_add_u32 v7, {KCB + 1536}, v7")
    a("v_mov_b32 v96, 0")
    a("v_cmp_gt_u32 vcc, 4, v0")
    a("s_and_saveexec_b64 s[8:9], vcc")
    a("ds_write_b32 v7, v96")
    a("s_mov_b64 exec, s[8:9]")
    a("s_waitcnt lgkmcnt(0)")
    a("s_barrier")
    dump_lds(a, 2, dump)
    st.stamp()
    a("v_lshrrev_b32 v3, 8, v0")
    a("v_and_b32 v4, 255, v0")
    a(f"v_mul_u32_u24 v5, {KCCH}, v3")
    a(f"v_add_u32 v5, {KCB}, v5")
    for e in range(12):
        a(f"v_add_u32 v{14+e}, v5, v{14+e}")
    a(f"v_mul_u32_u24 v6, {TCHB}, v3")
    a(f"v_lshl_add_u32 v6, v4, 4, v6")
    PP, QQ = 100, 108
    a("s_mov_b32 s14, 0xffff0000")
    for rd in range(2):
        pp = PP + 16*rd; qq = pp + 6
        for e in range(6):
            a(f"ds_read_u16 v{pp+e}, v{14+2*e} offset:{rd*2*KCCH}")
            a(f"ds_read_u16_d16_hi v{144+8*rd+e}, v{15+2*e} offset:{rd*2*KCCH}")
    for rd in range(2):
        pp = PP + 16*rd; qq = pp + 6
        a(f"s_waitcnt lgkmcnt({12 if rd == 0 else 8})") if False else None
    a("s_waitcnt lgkmcnt(0)")
    for rd in range(2):
        pp = PP + 16*rd; qq = pp + 6
        for e in range(6):
            a(f"v_and_or_b32 v{pp+e}, v{144+8*rd+e}, s14, v{pp+e}")
        for e in range(5):
            a(f"v_alignbit_b32 v{qq+e}, v{pp+e+1}, v{pp+e}, 16")
        o = rd*2*TCHB
        a(f"ds_write_b128 v6, v[{pp}:{pp+3}] offset:{o}")
        a(f"ds_write_b128 v6, v[{qq}:{qq+3}] offset:{o + TCOPY}")
        a(f"ds_write2_b32 v97, v{pp+1}, v{pp+2} offset0:0 offset1:1") if False else None
        a(f"v_add_u32 v97, {o + 2*TCOPY}, v6")
        a(f"v_add_u32 v98, {o + 3*TCOPY}, v6")
        a(f"ds_write2_b32 v97, v{pp+1}, v{pp+2} offset0:0 offset1:1")
        a(f"ds_write2_b32 v97, v{pp+3}, v{pp+4} offset0:2 offset1:3")
        a(f"ds_write2_b32 v98, v{qq+1}, v{qq+2} offset0:0 offset1:1")
        a(f"ds_write2_b32 v98, v{qq+3}, v{qq+4} offset0:2 offset1:3")
    a("v_mov_b32 v140, 0"); a("v_mov_b32 v141, 0"); a("v_mov_b32 v142, 0"); a("v_mov_b32 v143, 0")
    a("v_lshrrev_b32 v3, 2, v0")
    a(f"v_mul_u32_u24 v3, {TCOPY}, v3")
    a("v_and_b32 v4, 3, v0")
    a("v_lshl_add_u32 v3, v4, 4, v3")
    a("v_add_u32 v3, 4096, v3")
    a("v_cmp_gt_u32 vcc, 64, v0")
    a("s_and_saveexec_b64 s[8:9], vcc")
    a("ds_write_b128 v3, v[140:143]")
    a("s_mov_b64 exec, s[8:9]")
    a(f"v_lshlrev_b32 v3, 4, v0")
    a(f"v_add_u32 v3, {UB}, v3")
    a("v_cmp_gt_u32 vcc, 155, v0")
    a("s_and_saveexec_b64 s[8:9], vcc")
    for c in range(4):
        a(f"ds_write_b128 v3, v[140:143] offset:{c*UCH}")
    a("s_mov_b64 exec, s[8:9]")
    a("s_waitcnt vmcnt(0)")
    a("v_lshrrev_b32 v3, 5, v0")
    a("v_mul_u32_u24 v3, 80, v3")
    a("v_and_b32 v4, 31, v0")
    a("v_lshl_add_u32 v3, v4, 1, v3")
    a(f"v_add_u32 v3, {UB + 31*80}, v3")
    a("v_lshlrev_b32 v4, 1, v0")
    a(f"v_add_u32 v4, {XBB}, v4")
    for i in range(4):
        m, rs = 100, 101
        a(f"v_lshlrev_b32 v{m}, 16, v{SG+i}")
        a(f"v_and_b32 v{rs}, 0xffff0000, v{SG+i}")
        a(f"v_rcp_f32 v{rs}, v{rs}")
        for hh in range(2):
            xr = XG + 2*i + hh
            t = 102 + 6*hh
            a(f"v_lshlrev_b32 v{t}, 16, v{xr}")
            a(f"v_and_b32 v{t+1}, 0xffff0000, v{xr}")
            a(f"v_sub_f32 v{t}, v{t}, v{m}")
            a(f"v_sub_f32 v{t+1}, v{t+1}, v{m}")
            a(f"v_cvt_pk_bf16_f32 v{t+2}, v{t}, v{t+1}")
            a(f"v_lshlrev_b32 v{t}, 16, v{t+2}")
            a(f"v_and_b32 v{t+1}, 0xffff0000, v{t+2}")
            a(f"v_mul_f32 v{t}, v{t}, v{rs}")
            a(f"v_mul_f32 v{t+1}, v{t+1}, v{rs}")
            a(f"v_cvt_pk_bf16_f32 v{t+2}, v{t}, v{t+1}")
            c0 = 2*hh
            a(f"ds_write_b16 v3, v{t+2} offset:{c0*UCH + i*1280}")
            a(f"ds_write_b16_d16_hi v3, v{t+2} offset:{(c0+1)*UCH + i*1280}")
            a(f"ds_write_b16 v4, v{xr} offset:{c0*4096 + i*1024}")
            a(f"ds_write_b16_d16_hi v4, v{xr} offset:{(c0+1)*4096 + i*1024}")
    a("s_waitcnt lgkmcnt(0)")
    a("s_barrier")
    dump_lds(a, 3, dump)
    st.stamp()
    a("s_cmp_ge_u32 s3, 4")
    a(f"s_cbranch_scc1 {P}_end2")
    a(f"v_and_b32 v3, 31, v{LANE}")
    a(f"v_lshrrev_b32 v4, 5, v{LANE}")
    a("v_and_b32 v5, 3, v3")
    a("v_sub_u32 v5, 3, v5")
    a(f"v_mul_u32_u24 v5, {TCOPY}, v5")
    a("v_and_b32 v6, 28, v3")
    a("v_lshlrev_b32 v6, 1, v6")
    a("v_sub_u32 v5, v5, v6")
    a("v_lshl_add_u32 v5, v4, 4, v5")
    a(f"s_mul_i32 s8, s3, {TCHB}")
    a("s_add_u32 s8, s8, 56")
    VA, VB = 8, 9
    a(f"v_add_u32 v{VA}, s8, v5")
    a("v_mul_u32_u24 v5, 80, v3")
    a("v_lshl_add_u32 v5, v4, 4, v5")
    a(f"s_mul_i32 s8, s3, {UCH}")
    a(f"s_add_u32 s8, s8, {UB}")
    a(f"v_add_u32 v{VB}, s8, v5")
    AC0, AC1 = 16, 32
    for r in range(32): a(f"v_mov_b32 v{AC0+r}, 0")
    FR = 48
    def unit_reads(u):
        mp, s = u // 2, u % 2
        f = FR + 16*(u % 4)
        q1 = 2*mp - s; q2 = q1 + 64
        o1 = 32*(126 - q1); o2 = 32*(126 - q2)
        a(f"ds_read_b64 v[{f}:{f+1}], v{VA} offset:{o1}")
        a(f"ds_read_b64 v[{f+2}:{f+3}], v{VA} offset:{o1+8}")
        a(f"ds_read_b128 v[{f+8}:{f+11}], v{VB} offset:{(31-mp)*80 + 32*s}")
        a(f"ds_read_b128 v[{f+12}:{f+15}], v{VB} offset:{(63-mp)*80 + 32*s}")
        a(f"ds_read_b64 v[{f+4}:{f+5}], v{VA} offset:{o2}")
        a(f"ds_read_b64 v[{f+6}:{f+7}], v{VA} offset:{o2+8}")
    def unit_mfma(u):
        f = FR + 16*(u % 4)
        a(f"v_mfma_f32_32x32x16_bf16 v[{AC0}:{AC0+15}], v[{f}:{f+3}], v[{f+8}:{f+11}], v[{AC0}:{AC0+15}]")
        a(f"v_mfma_f32_32x32x16_bf16 v[{AC1}:{AC1+15}], v[{f}:{f+3}], v[{f+12}:{f+15}], v[{AC1}:{AC1+15}]")
        a(f"v_mfma_f32_32x32x16_bf16 v[{AC1}:{AC1+15}], v[{f+4}:{f+7}], v[{f+8}:{f+11}], v[{AC1}:{AC1+15}]")
    unit_reads(0); unit_reads(1)
    a("s_mov_b32 s8, 0")
    a.label(f"{P}_cl")
    for u in range(8):
        unit_reads(u + 2)
        a("s_waitcnt lgkmcnt(12)")
        unit_mfma(u)
    a(f"v_subrev_u32 v{VA}, 256, v{VA}")
    a(f"v_subrev_u32 v{VB}, 320, v{VB}")
    a("s_add_u32 s8, s8, 1")
    a("s_cmp_lt_u32 s8, 7")
    a(f"s_cbranch_scc1 {P}_cl")
    for u in range(8):
        if u < 6:
            unit_reads(u + 2)
            a("s_waitcnt lgkmcnt(12)")
        else:
            a(f"s_waitcnt lgkmcnt({6 if u == 6 else 0})")
        unit_mfma(u)
    st.stamp()
    a(f"v_and_b32 v3, 31, v{LANE}")
    a(f"v_lshrrev_b32 v4, 5, v{LANE}")
    a("v_mul_u32_u24 v5, 80, v3")
    a("v_lshl_add_u32 v5, v4, 3, v5")
    a(f"s_mul_i32 s8, s3, {UCH}")
    a(f"s_add_u32 s8, s8, {UB + 31*80}")
    a("v_add_u32 v5, s8, v5")
    a("v_lshlrev_b32 v6, 6, v3")
    a("v_lshl_add_u32 v6, v4, 3, v6")
    a(f"s_lshl_b32 s8, s3, 12")
    a(f"s_add_u32 s8, s8, {XBB}")
    a("v_add_u32 v7, s8, v6")
    a("s_lshl_b32 s9, s2, 2")
    a("s_add_u32 s9, s9, s3")
    a("s_lshl_b32 s9, s9, 12")
    a(f"v_lshlrev_b32 v{PDS}, 16, v{PDS}")
    UR, XR = 112, 128
    for T in range(2):
        for j in range(4):
            k = T*4 + j
            a(f"ds_read_b64 v[{UR+2*k}:{UR+2*k+1}], v5 offset:{T*2560 + 16*j}")
            a(f"ds_read_b64 v[{XR+2*k}:{XR+2*k+1}], v7 offset:{T*2048 + 16*j}")
    a("s_waitcnt lgkmcnt(0)")
    for T in range(2):
        for j in range(4):
            k = T*4 + j
            y = (AC0 if T == 0 else AC1) + 4*j
            t = 144 + 16*(k % 2)
            for p in range(2):
                a(f"v_lshlrev_b32 v{t+2*p}, 16, v{UR+2*k+p}")
                a(f"v_and_b32 v{t+2*p+1}, 0xffff0000, v{UR+2*k+p}")
            for e in range(4): a(f"v_mul_f32 v{t+e}, v{t+e}, v{PDS}")
            a(f"v_cvt_pk_bf16_f32 v{t+4}, v{t}, v{t+1}")
            a(f"v_cvt_pk_bf16_f32 v{t+5}, v{t+2}, v{t+3}")
            a(f"v_cvt_pk_bf16_f32 v{t+6}, v{y}, v{y+1}")
            a(f"v_cvt_pk_bf16_f32 v{t+7}, v{y+2}, v{y+3}")
            for p in range(2):
                a(f"v_lshlrev_b32 v{t+2*p}, 16, v{t+4+p}")
                a(f"v_and_b32 v{t+2*p+1}, 0xffff0000, v{t+4+p}")
                a(f"v_lshlrev_b32 v{t+8+2*p}, 16, v{t+6+p}")
                a(f"v_and_b32 v{t+8+2*p+1}, 0xffff0000, v{t+6+p}")
            for e in range(4): a(f"v_add_f32 v{t+e}, v{t+e}, v{t+8+e}")
            a(f"v_cvt_pk_bf16_f32 v{t+4}, v{t}, v{t+1}")
            a(f"v_cvt_pk_bf16_f32 v{t+5}, v{t+2}, v{t+3}")
            for p in range(2):
                a(f"v_lshlrev_b32 v{t+2*p}, 16, v{t+4+p}")
                a(f"v_and_b32 v{t+2*p+1}, 0xffff0000, v{t+4+p}")
                a(f"v_lshlrev_b32 v{t+8+2*p}, 16, v{XR+2*k+p}")
                a(f"v_and_b32 v{t+8+2*p+1}, 0xffff0000, v{XR+2*k+p}")
            for e in range(4): a(f"v_add_f32 v{t+e}, v{t+e}, v{t+8+e}")
            a(f"v_cvt_pk_bf16_f32 v{t+12}, v{t}, v{t+1}")
            a(f"v_cvt_pk_bf16_f32 v{t+13}, v{t+2}, v{t+3}")
            a(f"buffer_store_dwordx2 v[{t+12}:{t+13}], v6, s[56:59], s9 offen offset:{T*2048 + 16*j}")
    a.label(f"{P}_end2")
    if stamps:
        a("s_waitcnt vmcnt(0)")
        st.n = 7
        st.stamp()
        st.real(15)
        st.dump(18, 19, 3, 16, vtmp=200)
    a.label(f"{P}_end")
    a("s_endpgm")
    a.lines.append(".p2align 4")
    a.lines.append(f".type {P}_idx,@object")
    a.lines.append(f"{P}_idx:")
    tab = idx_table()
    for i in range(0, len(tab), 12):
        a.lines.append(".short " + ", ".join(str(x) for x in tab[i:i+12]))
    return a, 256, 256, LDS_CONV

def gen_stats_body(a, P, wg_sreg):
    srd(a, 12, 4, 5, L_*D_*2)
    srd_off(a, 16, 10, 11, OFF_STATS, 8192)
    a(f"s_lshl_b32 s20, s{wg_sreg}, 2")
    a("s_add_u32 s20, s20, s3")
    a("s_lshl_b32 s20, s20, 3")
    a("v_lshrrev_b32 v2, 3, v1")
    a("v_and_b32 v3, 7, v1")
    a("v_add_u32 v4, s20, v2")
    a("v_mul_u32_u24 v5, 1152, v4")
    a("v_lshl_add_u32 v5, v3, 4, v5")
    for j in range(9):
        a(f"buffer_load_dwordx4 v[{8+4*j}:{11+4*j}], v5, s[12:15], 0 offen offset:{128*j}")
    for r in (44, 45, 46, 47): a(f"v_mov_b32 v{r}, 0")
    a("v_mov_b32 v48, 0x3f803f80")
    for j in range(9):
        a(f"s_waitcnt vmcnt({8-j})")
        for q in range(4):
            a(f"v_dot2c_f32_bf16 v{44+q%2}, v{8+4*j+q}, v48")
            a(f"v_dot2c_f32_bf16 v{46+q%2}, v{8+4*j+q}, v{8+4*j+q}")
    a("s_nop 2")
    a("v_add_f32 v44, v44, v45")
    a("v_add_f32 v46, v46, v47")
    for dpp in ("quad_perm:[1,0,3,2]", "quad_perm:[2,3,0,1]", "row_half_mirror"):
        a("s_nop 1")
        a(f"v_add_f32_dpp v44, v44, v44 {dpp} row_mask:0xf bank_mask:0xf")
        a(f"v_add_f32_dpp v46, v46, v46 {dpp} row_mask:0xf bank_mask:0xf")
    a("s_mov_b32 s21, 0x3ae38e39")
    a("v_mul_f32 v44, s21, v44")
    a("v_mul_f32 v46, s21, v46")
    a("v_fma_f32 v46, -v44, v44, v46")
    a("v_max_f32 v46, 0, v46")
    rnd(a, 46, 46)
    a("v_add_f32 v46, 0x3727c5ac, v46")
    rnd(a, 46, 46)
    a("v_sqrt_f32 v46, v46")
    a("s_nop 0")
    a("v_cvt_pk_bf16_f32 v44, v44, v46")
    a("v_lshlrev_b32 v4, 2, v4")
    a("v_cmp_eq_u32 vcc, 0, v3")
    a("s_and_saveexec_b64 s[22:23], vcc")
    a("buffer_store_dword v44, v4, s[16:19], 0 offen")
    a("s_mov_b64 exec, s[22:23]")
```

```python
from gen_common import *

DMA_POS = [0, 4, 8]
CH = 12
NSLOT = 6
SLOTB = CH * 1024
XB = 112
ACC = [16, 32]
WFR = 48
CFR = 64
BMR = 72
HO  = 76
TMP = 80
R2  = 96
V_ST = 97
V_L16 = 1
V_L16B = 2
V_XD = 3
V_XT = 4
V_XT2 = 5
SUM = [6, 7]; SQ = [8, 9]; ONES = 10

def rnd_bf16(a, dst, src):
    a(f"v_cvt_pk_bf16_f32 v{dst}, v{src}, v{src}")
    a(f"v_and_b32 v{dst}, 0xffff0000, v{dst}")

def gen_gemm1(name="gemm1_kernel", standalone=True, stamps=False):
    a = Asm(); P = name
    st = Stamps(a, stamps)
    st.real(14)
    st.stamp()
    a("s_cmp_ge_u32 s2, 256")
    a(f"s_cbranch_scc1 {P}_end")
    a(f"s_load_dwordx2 s[10:11], s[0:1], {KA_WS}")
    a("v_and_b32 v11, 63, v0")
    a("v_lshrrev_b32 v12, 6, v0")
    a("s_and_b32 s4, s2, 7")
    a("s_lshl_b32 s4, s4, 1")
    a("s_bfe_u32 s5, s2, 0x10003")
    a("s_add_u32 s4, s4, s5")
    a("s_lshr_b32 s5, s2, 4")
    a("v_readfirstlane_b32 s3, v12")
    a("s_waitcnt lgkmcnt(0)")
    srd_off(a, 12, 10, 11, OFF_HT, SZ_T)
    a(f"s_mul_i32 s6, s4, {18*36*1024}")
    a(f"s_add_u32 s16, s10, s6")
    a(f"s_addc_u32 s17, s11, 0")
    a(f"s_and_b32 s17, s17, 0xffff")
    a(f"s_mov_b32 s18, {18*36*1024}")
    a(f"s_mov_b32 s19, 0x20000")
    srd_off(a, 20, 10, 11, OFF_CF, SZ_CF + 8192)
    srd_off(a, 24, 10, 11, OFF_HF, SZ_HF)
    a(f"v_lshlrev_b32 v{V_L16}, 4, v11")
    a(f"v_add_u32 v{V_L16B}, {3*SLOTB}, v{V_L16}")
    a("v_lshrrev_b32 v13, 4, v11")
    a("v_bfe_u32 v14, v11, 2, 2")
    a("v_xor_b32 v14, v14, v13")
    a("v_lshlrev_b32 v13, 12, v13")
    a("v_lshl_add_u32 v13, v14, 6, v13")
    a("v_and_b32 v14, 3, v11")
    a(f"v_lshl_add_u32 v{V_XD}, v14, 4, v13")
    a("v_lshrrev_b32 v13, 5, v11")
    a("v_bfe_u32 v14, v11, 2, 2")
    a("v_lshl_add_u32 v13, v13, 3, v14")
    a("v_lshlrev_b32 v13, 8, v13")
    a("v_xor_b32 v14, s3, v14")
    a("v_lshl_add_u32 v13, v14, 6, v13")
    a("v_bfe_u32 v14, v11, 4, 1")
    a("v_lshl_add_u32 v13, v14, 5, v13")
    a("v_and_b32 v14, 3, v11")
    a(f"v_lshl_add_u32 v{V_XT}, v14, 3, v13")
    a(f"v_add_u32 v{V_XT2}, {3*SLOTB}, v{V_XT}")
    for r in SUM + SQ: a(f"v_mov_b32 v{r}, 0")
    a(f"v_mov_b32 v{ONES}, 0x3f803f80")
    a("s_mul_i32 s7, s3, 3072")
    a("s_lshl_b32 s8, s5, 8")
    a(f"s_mul_i32 s9, s3, {12*4096}")
    a("s_add_u32 s8, s8, s9")
    a("s_mov_b32 s28, s7")
    a("s_mul_i32 s29, s4, 18*1024")
    a("s_lshl_b32 s30, s5, 2")
    a("s_add_u32 s30, s30, s3")
    a("s_mul_i32 s30, s30, 288")
    a("s_mul_i32 s31, s4, 18")
    a("s_add_u32 s30, s30, s31")
    a("s_lshl_b32 s30, s30, 10")
    a("s_mov_b32 s36, 0")

    tok = {}
    def issue_item(i):
        slot = i % NSLOT
        if i < 12:
            for j in range(3):
                a(f"s_add_u32 s33, s8, {i*48*4096 + j*16384 - j*1024}")
                if j == 0:
                    a(f"s_add_u32 m0, s7, {slot*SLOTB}")
                    a("s_nop 0")
                t = a.vm(f"buffer_load_dwordx4 v{V_XD}, s[12:15], s33 offen offset:{j*1024} lds")
        else:
            a(f"s_add_u32 m0, s7, {slot*SLOTB}")
            a("s_nop 0")
            for j in range(3):
                t = a.vm(f"buffer_load_dwordx4 v{V_L16}, s[16:19], s28 offen offset:{j*1024} lds")
            a(f"s_add_u32 s28, s28, {SLOTB}")
        tok[i] = t
    for i in range(4): issue_item(i)
    for q in range(2):
        a.vm(f"buffer_load_dwordx4 v[{CFR+4*q}:{CFR+4*q+3}], v{V_L16}, s[20:23], s29 offen")
        a("s_add_u32 s29, s29, 1024")
    a(f"v_mov_b32 v{V_ST}, 0x7fffffff")
    st.stamp()
    for p in range(12):
        a.wait_vm(tok[p])
        a("s_barrier")
        issue_item(p + 4)
        slot = p % NSLOT
        base = V_XT if slot < 3 else V_XT2
        so = (slot % 3) * SLOTB
        for ksl in range(3):
            r = XB + (p*3 + ksl)*4
            a(f"ds_read_b64_tr_b16 v[{r}:{r+1}], v{base} offset:{so + ksl*4096}")
            a(f"ds_read_b64_tr_b16 v[{r+2}:{r+3}], v{base} offset:{so + ksl*4096 + 1024}")
        for ksl in range(3):
            r = XB + (p*3 + ksl)*4
            a(f"s_waitcnt lgkmcnt({4 - 2*ksl})")
            for q in range(4):
                a(f"v_dot2c_f32_bf16 v{SUM[q%2]}, v{r+q}, v{ONES}")
                a(f"v_dot2c_f32_bf16 v{SQ[q%2]}, v{r+q}, v{r+q}")
    st.stamp()
    T = TMP
    a("s_nop 2")
    a(f"v_add_f32 v{SUM[0]}, v{SUM[0]}, v{SUM[1]}")
    a(f"v_add_f32 v{SQ[0]}, v{SQ[0]}, v{SQ[1]}")
    a(f"v_mov_b32 v{SUM[1]}, v{SUM[0]}")
    a(f"v_mov_b32 v{SQ[1]}, v{SQ[0]}")
    a("s_nop 1")
    a(f"v_permlane32_swap_b32 v{SUM[0]}, v{SUM[1]}")
    a(f"v_permlane32_swap_b32 v{SQ[0]}, v{SQ[1]}")
    a("s_nop 1")
    a(f"v_add_f32 v{SUM[0]}, v{SUM[0]}, v{SUM[1]}")
    a(f"v_add_f32 v{SQ[0]}, v{SQ[0]}, v{SQ[1]}")
    a(f"s_mov_b32 s34, 0x3ae38e39")
    a(f"v_mul_f32 v{T}, s34, v{SUM[0]}")
    a(f"v_mul_f32 v{T+1}, s34, v{SQ[0]}")
    a(f"v_fma_f32 v{T+1}, -v{T}, v{T}, v{T+1}")
    a(f"v_max_f32 v{T+1}, 0, v{T+1}")
    rnd_bf16(a, T+1, T+1)
    a(f"v_add_f32 v{T+1}, 0x3727c5ac, v{T+1}")
    rnd_bf16(a, T+1, T+1)
    a(f"v_sqrt_f32 v{T+1}, v{T+1}")
    a("s_nop 0")
    rnd_bf16(a, T+1, T+1)
    a(f"v_rcp_f32 v{T+1}, v{T+1}")
    a(f"v_cvt_pk_bf16_f32 v{T}, v{T}, v{T}")
    a(f"v_mul_f32 v{R2}, v{T+1}, v{T+1}")
    a(f"v_xor_b32 v{T}, 0x80008000, v{T}")
    a(f"v_and_b32 v{T+2}, 0xffff, v{T}")
    a("v_cmp_gt_u32 vcc, 32, v11")
    a(f"v_mov_b32 v{BMR+2}, 0")
    a(f"v_mov_b32 v{BMR+3}, 0")
    a(f"v_cndmask_b32 v{BMR}, 0, v{T}, vcc")
    a(f"v_cndmask_b32 v{BMR+1}, 0, v{T+2}, vcc")
    def frag_read(n):
        nn = n % 72
        c = nn // CH; i = nn % CH
        slot = c % NSLOT
        base = V_L16 if slot < 3 else V_L16B
        f = WFR + 4*(n % 4)
        a(f"ds_read_b128 v[{f}:{f+3}], v{base} offset:{(slot%3)*SLOTB + i*1024}")
    a.wait_vm(tok[12]); a("s_barrier")
    a(f"s_add_u32 m0, s7, {(16 % NSLOT)*SLOTB}")
    a("s_nop 0")
    a.vm(f"buffer_load_dwordx4 v{V_L16}, s[16:19], s28 offen lds")
    for n in range(3): frag_read(n)
    st.stamp()
    a("s_mov_b32 s32, 0")
    a.label(f"{P}_loop")
    body_start = len(a.lines)
    def epilogue_ops(acc):
        ops = []
        for grp in range(2):
            for j in range(4):
                g = acc + 8*grp + j; u = acc + 8*grp + 4 + j
                t = TMP + 4*grp + j
                ops.append(f"v_max_f32 v{t}, 0, v{g}")
                ops.append(f"v_mul_f32 v{t+8}, v{u}, v{R2}")
                ops.append(f"v_mul_f32 v{t}, v{t}, v{t+8}")
        for q in range(4):
            ops.append(f"v_cvt_pk_bf16_f32 v{HO+q}, v{TMP+2*q}, v{TMP+2*q+1}")
        return ops
    events = []
    seq = []
    for tile in range(2):
        for k in range(37):
            fr = tile*36 + (k-1)
            if k >= 1:
                nxt = fr + 3
                if nxt % CH == 0:
                    seq.append(("bar", nxt // CH))
                seq.append(("read", nxt))
                seq.append(("mfma", tile, k))
                if (nxt % CH) in DMA_POS: seq.append(("dma1", nxt // CH, DMA_POS.index(nxt % CH)))
            else:
                seq.append(("mfma", tile, k))
            if k == 1: seq.append(("cf", tile))
            if k == 18: seq.append(("hst",))
    def simulate(niter):
        order = [("dma", 13), ("dma", 14), ("dma", 15), ("cf0",), ("dma", 16)]
        order = [("cf", -2), ("cf", -1)] + [("dma", i) for i in range(4, 16)] + [("dmap", 16, 0)]
        waits = []
        done = 2 + 9
        done = order.index(("dma", 12)) + 1
        for it in range(niter):
            for e in seq:
                if e[0] == "bar":
                    item = 12 + it*6 + e[1]
                    cnt = 0
                    found = False
                    key = ("dma", item) if ("dma", item) in order else ("dmap", item, 2)
                    for o in reversed(order):
                        if o == key: found = True; break
                        cnt += 3 if o[0] == "dma" else 1
                    assert found
                    done = max(done, order.index(key) + 1)
                    waits.append((it, e[1], cnt))
                elif e[0] == "dma1":
                    order.append(("dmap", 12 + it*6 + e[1] + 4, e[2]))
                elif e[0] == "mfma" and e[2] == 0:
                    t = it*2 + e[1]
                    assert order.index(("cf", t - 2)) < done, ("CF not covered", t)
                elif e[0] == "cf": order.append(("cf", it*2 + e[1]))
                elif e[0] == "hst": order.append(("hst", it))
        return waits
    ws = simulate(4)
    nwait = {}
    for it, c, cnt in ws:
        nwait[c] = min(nwait.get(c, 99), cnt)
    epi = {0: epilogue_ops(ACC[1]), 1: epilogue_ops(ACC[0])}
    for e in seq:
        if e[0] == "bar":
            c = e[1]
            a(f"s_waitcnt vmcnt({nwait[c]})")
            a("s_barrier")
            slot = (c + 4) % NSLOT
            a(f"s_add_u32 m0, s7, {slot*SLOTB}")
        elif e[0] == "dma1":
            j = e[2]
            a(f"buffer_load_dwordx4 v{V_L16}, s[16:19], s28 offen offset:{j*1024} lds")
            if j == 2: a(f"s_add_u32 s28, s28, {SLOTB}")
        elif e[0] == "read":
            frag_read(e[1])
        elif e[0] == "mfma":
            tile, k = e[1], e[2]
            acc = ACC[tile]
            if k == 0:
                cf = CFR + 4*tile
                a(f"v_mfma_f32_32x32x16_bf16 v[{acc}:{acc+15}], v[{cf}:{cf+3}], v[{BMR}:{BMR+3}], 0")
            else:
                fr = tile*36 + k - 1
                f = WFR + 4*(fr % 4)
                x = XB + 4*(k-1)
                a("s_waitcnt lgkmcnt(3)")
                a(f"v_mfma_f32_32x32x16_bf16 v[{acc}:{acc+15}], v[{f}:{f+3}], v[{x}:{x+3}], v[{acc}:{acc+15}]")
                if 4 <= k <= 17:
                    ops = epi[tile]
                    lo = (k-4)*2
                    for o in ops[lo:lo+2]: a(o)
        elif e[0] == "cf":
            cf = CFR + 4*e[1]
            a(f"buffer_load_dwordx4 v[{cf}:{cf+3}], v{V_L16}, s[20:23], s29 offen")
            a("s_add_u32 s29, s29, 1024")
        elif e[0] == "hst":
            a(f"buffer_store_dwordx4 v[{HO}:{HO+3}], v{V_ST}, s[24:27], s30 offen")
            a("s_add_u32 s30, s30, s36")
            a("s_mov_b32 s36, 1024")
            a(f"v_mov_b32 v{V_ST}, v{V_L16}")
    st.stamp_dyn(32, 64)
    if stamps: a(f"s_add_u32 m0, s7, {4*SLOTB}")
    a("s_add_u32 s32, s32, 1")
    a("s_cmp_lt_u32 s32, 9")
    a(f"s_cbranch_scc1 {P}_loop")
    a("s_nop 15")
    for o in epilogue_ops(ACC[1]): a(o)
    a(f"buffer_store_dwordx4 v[{HO}:{HO+3}], v{V_L16}, s[24:27], s30 offen")
    st.n = 13
    a("s_waitcnt vmcnt(0)") if stamps else None
    st.stamp()
    st.real(15)
    st.dump(10, 11, 3, 16, vtmp=98)
    a.label(f"{P}_end")
    a("s_endpgm")
    return a, 256, 256, NSLOT*SLOTB, nwait
```

```python
from gen_common import *

ACC = 0
ST = 80
V_H = 224
V_W = 225
V_W4 = 226
V_LANE = 227
T0 = 228

def gen_gemm2(name="gemm2_kernel"):
    a = Asm(); P = name
    a("s_cmp_ge_u32 s2, 256")
    a(f"s_cbranch_scc1 {P}_end")
    a(f"s_load_dwordx2 s[10:11], s[0:1], {KA_WS}")
    a(f"s_load_dwordx2 s[8:9], s[0:1], {KA_OUT}")
    a(f"v_and_b32 v{V_LANE}, 63, v0")
    a(f"v_lshrrev_b32 v{T0}, 6, v0")
    a("s_and_b32 s4, s2, 7")
    a("s_lshl_b32 s4, s4, 2")
    a("s_bfe_u32 s5, s2, 0x20003")
    a("s_add_u32 s4, s4, s5")
    a("s_lshr_b32 s5, s2, 5")
    a(f"v_readfirstlane_b32 s3, v{T0}")
    a("s_waitcnt lgkmcnt(0)")
    srd_off(a, 12, 10, 11, OFF_HF, SZ_HF)
    srd_off(a, 16, 10, 11, OFF_WDF, SZ_WDF)
    srd_off(a, 20, 10, 11, OFF_HT, SZ_T)
    srd(a, 24, 8, 9, L_*D_*2)
    L = V_LANE
    a(f"v_lshrrev_b32 v{T0}, 5, v{L}")
    a(f"v_lshlrev_b32 v{T0}, 10, v{T0}")
    a(f"v_bfe_u32 v{T0+1}, v{L}, 4, 1")
    a(f"v_lshl_add_u32 v{T0}, v{T0+1}, 9, v{T0}")
    a(f"v_and_b32 v{T0+1}, 15, v{L}")
    a(f"v_lshl_add_u32 v{V_H}, v{T0+1}, 4, v{T0}")
    a(f"v_lshlrev_b32 v{V_W}, 4, v{L}")
    a(f"v_lshrrev_b32 v{T0}, 4, v{L}")
    a(f"v_and_b32 v{T0+1}, 7, v{L}")
    a(f"v_lshl_add_u32 v{T0}, v{T0}, 3, v{T0+1}")
    a(f"v_lshlrev_b32 v{T0}, 4, v{T0}")
    a(f"v_add_u32 v{V_W4}, 4096, v{T0}")
    a("s_mul_i32 s28, s4, 2*288*1024")
    a("s_lshl_b32 s6, s3, 11")
    a("s_add_u32 s28, s28, s6")
    for q in range(4):
        a(f"s_add_u32 s6, s3, {q}")
        a("s_and_b32 s6, s6, 3")
        a("s_lshr_b32 s7, s6, 1")
        a("s_mul_i32 s7, s7, 294912")
        a("s_and_b32 s6, s6, 1")
        a("s_lshl_b32 s6, s6, 8")
        a(f"s_add_u32 s{40+q}, s28, s7")
        a(f"s_add_u32 s{40+q}, s{40+q}, s6")
    a("s_mul_i32 s30, s5, 144")
    a("s_add_u32 s30, s30, s3")
    a("s_mul_i32 s30, s30, 4608")
    def loads(st):
        b = ST + 36*st
        for e in range(4):
            a(f"buffer_load_dwordx4 v[{b+4*e}:{b+4*e+3}], v{V_W}, s[16:19], s30 offen offset:{e*1024}")
        a(f"buffer_load_dwordx4 v[{b+16}:{b+19}], v{V_W4}, s[16:19], s30 offen")
        for q in range(4):
            a(f"buffer_load_dwordx4 v[{b+20+4*q}:{b+23+4*q}], v{V_H}, s[12:15], s{40+q} offen")
        for q in range(4): a(f"s_add_u32 s{40+q}, s{40+q}, 8192")
        a(f"s_add_u32 s30, s30, {4*4608}")
    def mfmas(st):
        b = ST + 36*st
        for e in range(5):
            for q in range(4):
                c = ACC + (e*4+q)*4
                a(f"v_mfma_f32_16x16x32_bf16 v[{c}:{c+3}], v[{b+4*e}:{b+4*e+3}], v[{b+20+4*q}:{b+23+4*q}], v[{c}:{c+3}]")
    for st in range(4): loads(st)
    for i in range(80): a(f"v_mov_b32 v{ACC+i}, 0")
    a("s_mov_b32 s32, 0")
    a.label(f"{P}_loop")
    for st in range(4):
        a("s_waitcnt vmcnt(27)")
        mfmas(st)
        loads(st)
    a("s_add_u32 s32, s32, 1")
    a("s_cmp_lt_u32 s32, 8")
    a(f"s_cbranch_scc1 {P}_loop")
    for st in range(4):
        a(f"s_waitcnt vmcnt({27 - 9*st})")
        mfmas(st)
    a(f"v_lshrrev_b32 v{T0}, 4, v{L}")
    a(f"v_lshlrev_b32 v{T0}, 14, v{T0}")
    a(f"v_and_b32 v{T0+1}, 15, v{L}")
    a(f"v_lshl_add_u32 v{T0}, v{T0+1}, 1, v{T0}")
    a("s_mul_i32 s33, s5, 72*4096")
    a("s_lshl_b32 s34, s4, 7")
    a("s_add_u32 s33, s33, s34")
    a("s_lshl_b32 s34, s3, 5")
    a("s_add_u32 s33, s33, s34")
    HR = ST
    for e in range(5):
        for r in range(4):
            a(f"s_add_u32 s34, s33, {(16*e + r)*4096}")
            a(f"buffer_load_ushort v{HR+4*e+r}, v{T0}, s[20:23], s34 offen")
    for q in range(1, 4):
        a(f"s_add_u32 s34, s3, {q}")
        a("s_and_b32 s34, s34, 3")
        a("s_mul_i32 s35, s34, 15360")
        a(f"s_add_u32 s35, s35, {(q-1)*5120}")
        a(f"v_add_u32 v{T0+2}, s35, v{V_W}")
        for e in range(5):
            c = ACC + (e*4+q)*4
            a(f"ds_write_b128 v{T0+2}, v[{c}:{c+3}] offset:{e*1024}")
    a("s_waitcnt lgkmcnt(0)")
    a("s_barrier")
    a("s_mul_i32 s35, s3, 15360")
    a(f"v_add_u32 v{T0+2}, s35, v{V_W}")
    RD = 100
    for sl in range(3):
        for e in range(5):
            r = RD + (sl*5+e)*4
            a(f"ds_read_b128 v[{r}:{r+3}], v{T0+2} offset:{sl*5120 + e*1024}")
    a(f"v_and_b32 v{T0+3}, 15, v{L}")
    a("s_lshl_b32 s34, s4, 6")
    a("s_lshl_b32 s35, s3, 4")
    a("s_add_u32 s34, s34, s35")
    a(f"v_add_u32 v{T0+3}, s34, v{T0+3}")
    a(f"v_mul_u32_u24 v{T0+3}, 1152, v{T0+3}")
    a(f"v_lshrrev_b32 v{T0+4}, 4, v{L}")
    a(f"v_lshl_add_u32 v{T0+3}, v{T0+4}, 3, v{T0+3}")
    a("s_mul_i32 s34, s5, 144")
    a(f"v_add_u32 v{T0+3}, s34, v{T0+3}")
    a(f"v_cmp_gt_u32 vcc, 32, v{L}")
    a(f"v_mov_b32 v{T0+5}, 0x7fffffff")
    a("s_nop 0")
    a(f"v_cndmask_b32 v{T0+5}, v{T0+5}, v{T0+3}, vcc")
    a("s_waitcnt lgkmcnt(0) vmcnt(0)")
    for e in range(5):
        c = ACC + (e*4)*4
        for r in range(4):
            for sl in range(3):
                a(f"v_add_f32 v{c+r}, v{c+r}, v{RD + (sl*5+e)*4 + r}")
        o = T0 + 8
        a(f"v_cvt_pk_bf16_f32 v{o}, v{c}, v{c+1}")
        a(f"v_cvt_pk_bf16_f32 v{o+1}, v{c+2}, v{c+3}")
        a(f"v_lshlrev_b32 v{o+2}, 16, v{o}")
        a(f"v_and_b32 v{o+3}, 0xffff0000, v{o}")
        a(f"v_lshlrev_b32 v{o+4}, 16, v{o+1}")
        a(f"v_and_b32 v{o+5}, 0xffff0000, v{o+1}")
        for r in range(4):
            a(f"v_lshlrev_b32 v{HR+4*e+r}, 16, v{HR+4*e+r}")
            a(f"v_add_f32 v{o+2+r}, v{o+2+r}, v{HR+4*e+r}")
        oo = T0 + 16 + 2*(e % 2)
        a(f"v_cvt_pk_bf16_f32 v{oo}, v{o+2}, v{o+3}")
        a(f"v_cvt_pk_bf16_f32 v{oo+1}, v{o+4}, v{o+5}")
        a(f"buffer_store_dwordx2 v[{oo}:{oo+1}], v{T0+3 if e < 4 else T0+5}, s[24:27], 0 offen offset:{e*32}")
    a.label(f"{P}_end")
    a("s_endpgm")
    return a, 256, 256, 61440
```

```python
from gen_common import *
import k_conv

def gen_wprep(name="wprep_kernel"):
    a = Asm()
    P = name
    a(f"s_cmp_ge_u32 s2, 208")
    a(f"s_cbranch_scc1 {P}_end")
    a(f"s_cmp_ge_u32 s2, 144")
    a(f"s_cbranch_scc1 {P}_stats")
    a(f"s_load_dwordx2 s[4:5], s[0:1], {KA_WG}")
    a(f"s_load_dwordx2 s[6:7], s[0:1], {KA_WU}")
    a(f"s_load_dwordx2 s[8:9], s[0:1], {KA_WD}")
    a(f"s_load_dwordx2 s[10:11], s[0:1], {KA_WS}")
    a("v_and_b32 v1, 63, v0")
    a("v_lshrrev_b32 v2, 6, v0")
    a("s_waitcnt lgkmcnt(0)")
    a("v_readfirstlane_b32 s3, v2")
    srd(a, 12, 4, 5, SZ_W)
    srd(a, 16, 6, 7, SZ_W)
    srd(a, 20, 8, 9, SZ_W)
    srd_off(a, 24, 10, 11, OFF_WF, SZ_WF)
    srd_off(a, 28, 10, 11, OFF_CF, SZ_CF)
    srd_off(a, 32, 10, 11, OFF_WDF, SZ_WDF)
    a("s_cmp_ge_u32 s2, 72")
    a(f"s_cbranch_scc1 {P}_jobB")
    a("v_lshrrev_b32 v3, 3, v1")
    a("v_and_b32 v4, 7, v1")
    a("v_and_b32 v5, 2, v3")
    a("v_xor_b32 v6, v4, v5")
    a("v_xor_b32 v7, 4, v6")
    a("v_mul_u32_u24 v3, 9216, v3")
    a("v_lshl_add_u32 v8, v6, 4, v3")
    a("v_lshl_add_u32 v9, v7, 4, v3")
    a("v_lshrrev_b32 v10, 5, v1")
    a("v_bfe_u32 v11, v1, 4, 1")
    a("v_bfe_u32 v12, v1, 2, 2")
    a("v_and_b32 v13, 3, v1")
    a("v_lshrrev_b32 v14, 1, v13")
    a("s_lshl_b32 s36, s3, 1")
    a("v_add_u32 v15, s36, v11")
    a("v_and_b32 v16, 2, v12")
    a("v_lshlrev_b32 v17, 2, v14")
    a("v_xor_b32 v16, v16, v17")
    a("v_xor_b32 v15, v15, v16")
    a("v_lshlrev_b32 v15, 4, v15")
    a("v_lshl_add_u32 v10, v10, 3, v12")
    a("v_lshl_add_u32 v15, v10, 7, v15")
    a("v_mul_u32_u24 v14, 36864, v14")
    a("v_add_u32 v15, v15, v14")
    a("v_and_b32 v13, 1, v13")
    a("v_lshl_add_u32 v15, v13, 3, v15")
    a("v_lshlrev_b32 v18, 4, v1")
    a("v_mov_b32 v19, 0")
    a("v_mov_b32 v20, 0x3f803f80")
    a("s_lshl_b32 s37, s2, 2")
    a("s_add_u32 s37, s37, s3")
    a("s_mul_i32 s38, s37, 36864")
    a("s_lshl_b32 s39, s2, 7")
    a("s_mul_i32 s40, s3, 9*8*9216")
    a("s_add_u32 s39, s39, s40")
    a("s_mul_i32 s41, s3, 9*1024")
    for rnd in range(2):
        for b in range(9):
            a(f"s_add_u32 s42, s39, {(rnd*288 + b*8)*9216}")
            a(f"s_add_u32 m0, s41, {b*1024}")
            a("s_nop 0")
            a("buffer_load_dwordx4 v8, s[12:15], s42 offen lds")
            a(f"s_add_u32 m0, s41, {36864 + b*1024}")
            a("s_nop 0")
            a("buffer_load_dwordx4 v9, s[16:19], s42 offen lds")
        a("s_waitcnt vmcnt(0)")
        a("s_barrier")
        for ks in range(18):
            f = 24 + 4*(ks % 4)
            a(f"ds_read_b64_tr_b16 v[{f}:{f+1}], v15 offset:{ks*2048}")
            a(f"ds_read_b64_tr_b16 v[{f+2}:{f+3}], v15 offset:{ks*2048+512}")
            a("s_waitcnt lgkmcnt(0)")
            for q in range(4):
                a(f"v_dot2c_f32_bf16 v19, v{f+q}, v20")
            a(f"s_add_u32 s42, s38, {(rnd*18+ks)*1024}")
            a(f"buffer_store_dwordx4 v[{f}:{f+3}], v18, s[24:27], s42 offen")
        if rnd == 0:
            a("s_waitcnt lgkmcnt(0)")
            a("s_barrier")
    a("s_nop 2")
    a("v_mov_b32 v21, v19")
    a("s_nop 1")
    a("v_permlane32_swap_b32 v19, v21")
    a("s_nop 1")
    a("v_add_f32 v19, v19, v21")
    a("v_cvt_pk_bf16_f32 v22, v19, v19")
    a("v_and_b32 v23, 0xffff0000, v22")
    a("v_sub_f32 v19, v19, v23")
    a("v_cvt_pk_bf16_f32 v40, v19, v19")
    a("v_and_b32 v41, 0xffff0000, v40")
    a("v_sub_f32 v19, v19, v41")
    a("v_cvt_pk_bf16_f32 v42, v19, v19")
    a("v_lshrrev_b32 v23, 16, v23")
    a("v_or_b32 v44, v23, v41")
    a("v_and_b32 v45, 0xffff, v42")
    a("v_mov_b32 v46, 0")
    a("v_mov_b32 v47, 0")
    a("v_cmp_gt_u32 vcc, 32, v1")
    a("s_nop 1")
    a("v_cndmask_b32 v44, 0, v44, vcc")
    a("v_cndmask_b32 v45, 0, v45, vcc")
    a("s_lshl_b32 s42, s37, 10")
    a("buffer_store_dwordx4 v[44:47], v18, s[28:31], s42 offen")
    a(f"s_branch {P}_end")
    a.label(f"{P}_jobB")
    a("s_sub_u32 s36, s2, 72")
    a("v_lshlrev_b32 v18, 4, v1")
    a("s_mul_i32 s37, s36, 73728")
    a("s_mul_i32 s38, s3, 18*1024")
    a("s_add_u32 s37, s37, s38")
    for n in range(18):
        a(f"s_add_u32 s42, s37, {n*1024}")
        a(f"s_add_u32 m0, s38, {n*1024}")
        a("s_nop 0")
        a("buffer_load_dwordx4 v18, s[20:23], s42 offen lds")
    a("v_lshrrev_b32 v3, 4, v1")
    a("v_lshrrev_b32 v4, 1, v3")
    a("v_and_b32 v5, 1, v3")
    a("v_bfe_u32 v6, v1, 2, 2")
    a("v_lshl_add_u32 v6, v5, 2, v6")
    a("v_lshl_add_u32 v6, v4, 4, v6")
    a("v_mul_u32_u24 v6, 1152, v6")
    a("v_and_b32 v7, 3, v1")
    a("v_lshl_add_u32 v6, v7, 3, v6")
    a("s_mul_i32 s39, s3, 288")
    a("v_add_u32 v15, s39, v6")
    a("v_and_b32 v8, 15, v1")
    a("v_lshl_add_u32 v9, v3, 3, v8")
    a("v_lshlrev_b32 v9, 4, v9")
    a("v_add_u32 v9, 4096, v9")
    a("v_cmp_gt_u32 vcc, 8, v8")
    a("v_mov_b32 v10, 0x7fffffff")
    a("s_nop 0")
    a("v_cndmask_b32 v9, v10, v9, vcc")
    a("s_waitcnt vmcnt(0)")
    a("s_barrier")
    a("s_lshl_b32 s40, s3, 1")
    a("s_mul_i32 s40, s40, 144")
    a("s_lshl_b32 s41, s36, 1")
    a("s_add_u32 s40, s40, s41")
    a("s_mul_i32 s40, s40, 4608")
    n = 0
    for jj in range(2):
        for sp in range(2):
            for e in range(5):
                f = 24 + 4*(n % 4); n += 1
                off = sp*36864 + jj*144 + 32*e
                a(f"ds_read_b64_tr_b16 v[{f}:{f+1}], v15 offset:{off}")
                a(f"ds_read_b64_tr_b16 v[{f+2}:{f+3}], v15 offset:{off+9216}")
                a("s_waitcnt lgkmcnt(0)")
                so = (jj*144 + sp)*4608 + (e*1024 if e < 4 else 0)
                a(f"s_add_u32 s42, s40, {so}")
                a(f"buffer_store_dwordx4 v[{f}:{f+3}], {'v18' if e < 4 else 'v9'}, s[32:35], s42 offen")
    a(f"s_branch {P}_end")
    a.label(f"{P}_stats")
    a(f"s_load_dwordx2 s[4:5], s[0:1], {KA_X}")
    a(f"s_load_dwordx2 s[10:11], s[0:1], {KA_WS}")
    a("v_and_b32 v1, 63, v0")
    a("v_lshrrev_b32 v2, 6, v0")
    a("s_sub_u32 s24, s2, 144")
    a("s_waitcnt lgkmcnt(0)")
    a("v_readfirstlane_b32 s3, v2")
    k_conv.gen_stats_body(a, P, 24)
    a.label(f"{P}_end")
    a("s_endpgm")
    return a, 64, 64, 73728 + 64
```

```python
import sys
from gen_common import *
from asmlib import check_hazards
import k_wprep, k_gemm1, k_gemm2, k_conv

HEADER = open("cdna_kernels/" + NAME + ".s.ref").read().split("; Override launch")[0]

def build(kernels, launches):
    out = HEADER
    for n, g, b, l in launches:
        out += f"; @launch kernel={n} grid=({g},1,1) block=({b},1,1) lds={l}\n"
    out += '.amdgcn_target "amdgcn-amd-amdhsa--gfx950"\n.text\n'
    for n, a, v, acc in kernels:
        probs = check_hazards(a.lines, n)
        for p in probs: print("HAZARD", p, file=sys.stderr)
        out += kernel_header(n) + a.text() + kernel_desc(n, v, acc)
    return out

STAMPS = sys.argv[2] if len(sys.argv) > 2 else ""
if __name__ == "__main__":
    ks, ls = [], []
    a, v, acc, lds = k_wprep.gen_wprep("wprep_kernel"); ks.append(("wprep_kernel", a, v, acc)); ls.append(("wprep_kernel", 208, 256, lds))
    a, v, acc, lds = k_conv.gen_conv("conv_kernel", stamps=(STAMPS == "conv"), dump=(int(STAMPS[4:]) if STAMPS.startswith("dump") else 0)); ks.append(("conv_kernel", a, v, acc)); ls.append(("conv_kernel", 144, 512, lds))
    a, v, acc, lds, _ = k_gemm1.gen_gemm1("gemm1_kernel", stamps=(STAMPS == "gemm1")); ks.append(("gemm1_kernel", a, v, acc)); ls.append(("gemm1_kernel", 256, 256, lds))
    a, v, acc, lds = k_gemm2.gen_gemm2("gemm2_kernel"); ks.append(("gemm2_kernel", a, v, acc)); ls.append(("gemm2_kernel", 256, 256, lds))
    s = build(ks, ls)
    open(sys.argv[1] if len(sys.argv) > 1 else "test_gemm.s", "w").write(s)
```

```python
import sys
sys.path.insert(0, "dev")
from hb import *
from hb import _check, _hip
KD = """.section .rodata,"a"
.p2align 6
.amdhsa_kernel {name}
  .amdhsa_next_free_vgpr 128
  .amdhsa_next_free_sgpr 102
  .amdhsa_accum_offset 128
  .amdhsa_group_segment_fixed_size 0
  .amdhsa_kernarg_size 16
  .amdhsa_user_sgpr_count 2
  .amdhsa_user_sgpr_kernarg_segment_ptr 1
  .amdhsa_system_sgpr_workgroup_id_x 1
.end_amdhsa_kernel
.text
"""
def k(name, run, wgbase):
    lpr = run // 16
    body = []
    rows_per_instr = 1024 // run
    for b in range(18):
        stride = rows_per_instr * 9216 if run < 1024 else 1024
        body.append(f"s_add_u32 s38, s34, {b*stride}\ns_add_u32 m0, s36, {b*1024}\ns_nop 0\nbuffer_load_dwordx4 v8, s[8:11], s38 offen lds")
    wavestride = 18 * rows_per_instr * 9216 if run < 1024 else 18*1024
    return f""".globl {name}
.p2align 8
.type {name},@function
{name}:
s_load_dwordx2 s[4:5], s[0:1], 0
s_load_dwordx2 s[6:7], s[0:1], 8
s_memtime s[22:23]
v_and_b32 v1, 63, v0
v_lshrrev_b32 v2, 6, v0
v_lshrrev_b32 v3, {lpr.bit_length()-1}, v1
v_and_b32 v4, {lpr-1}, v1
v_readfirstlane_b32 s3, v2
v_mul_u32_u24 v3, 9216, v3
v_lshl_add_u32 v8, v4, 4, v3
s_waitcnt lgkmcnt(0)
s_mov_b32 s8, s4
s_mov_b32 s9, s5
s_mov_b32 s10, 0x1000000
s_mov_b32 s11, 0x20000
s_mov_b32 s12, s6
s_mov_b32 s13, s7
s_mov_b32 s14, 0x100000
s_mov_b32 s15, 0x20000
{wgbase}
s_mul_i32 s35, s3, {wavestride}
s_add_u32 s34, s34, s35
s_mul_i32 s36, s3, 18*1024
""" + "\n".join(body) + f"""
s_waitcnt vmcnt(0)
s_memtime s[26:27]
s_waitcnt lgkmcnt(0)
s_sub_u32 s26, s26, s22
v_mov_b32 v3, s26
s_lshl_b32 s30, s2, 3
s_add_u32 s30, s30, s3
s_lshl_b32 s30, s30, 2
v_mov_b32 v4, s30
v_cmp_eq_u32 vcc, 0, v1
s_and_saveexec_b64 s[30:31], vcc
buffer_store_dword v3, v4, s[12:15], 0 offen
s_waitcnt vmcnt(0)
s_endpgm
""" + KD.format(name=name)
src = '.amdgcn_target "amdgcn-amd-amdhsa--gfx950"\n.text\n'
cf = [("contig", 1024, "s_and_b32 s34, s2, 63\ns_mul_i32 s34, s34, 147456"),
      ("same", 1024, "s_mov_b32 s34, 0"),
      ("same8", 1024, "s_and_b32 s34, s2, 7\ns_mul_i32 s34, s34, 147456")]
for c in cf: src += k(*c)
co = build(src, [c[0] for c in cf], 2)
if len(sys.argv) > 1 and sys.argv[1] == "build": sys.exit(0)
data = DeviceBuffer(16 << 20); out = DeviceBuffer(1 << 20); big = DeviceBuffer(600 << 20)
_check(_hip.hipMemset(data._ptr, 1, 16 << 20))
ka = kargs([data.ptr, out.ptr])
for nm, run, _ in cf:
    kk = AsmKernel(co, nm)
    for nwg in (8, 64, 256):
        for cold in (0, 1):
            r = []
            for rep in range(3):
                if cold: _check(_hip.hipMemset(big._ptr, rep, 600 << 20))
                sync()
                kk.launch((nwg,1,1), (512,1,1), ka, 150*1024); sync()
                o = out.to_numpy(np.uint32, (256, 8))[:nwg]
                r.append((int(np.median(o)), int(np.median(o.max(axis=1))), int(o.max())))
            print(f"{nm:8s} nwg {nwg} cold {cold}: (median wave, median WG max, max) cycles {r}")
```
